```python
import torch

def _softmax(x, axis=-1):
    return torch.softmax(x, dim=axis)
def _gelu(x):
    return torch.nn.functional.gelu(x, approximate="tanh")
def _silu(x):
    return torch.nn.functional.silu(x)
def _sigmoid(x):
    return torch.sigmoid(x)
def _layernorm(x, axis=-1, eps=1e-5):
    m = x.mean(dim=axis, keepdim=True)
    v = x.var(dim=axis, keepdim=True, unbiased=False)
    return (x - m) / torch.sqrt(v + eps)
def _scatter_add(tgt, idx, src, axis=0):
    return tgt.clone().index_add_(axis, idx, src)
def _segment_sum(src, seg, n):
    out = torch.zeros((n,) + src.shape[1:], dtype=src.dtype)
    return out.index_add_(0, seg, src)
def _pad(x, pw):
    flat = tuple(v for pair in reversed(pw) for v in pair)
    return torch.nn.functional.pad(x, flat)

kernel_name = 'concat_heads__ssm_conv_s4__mha_block__prompt'

def setup_inputs():

    _w = (lambda a: (lambda t: t.to(torch.bfloat16) if t.is_floating_point() else t)(torch.as_tensor(a)))
    def _A_setup():
        B, L, D, N = 1, 2048, 576, 128
        A_re = -(lambda _x: torch.exp(torch.as_tensor(_x)))((lambda *s: torch.randn(*s, dtype=torch.bfloat16) * 6.4)(D, N))
        A_im = torch.pi * (lambda *s: torch.randn(*s, dtype=torch.bfloat16) * 0.1)(D, N)
        B_re = (lambda *s: torch.randn(*s, dtype=torch.bfloat16) * 0.2)(D, N)
        B_im = (lambda *s: torch.randn(*s, dtype=torch.bfloat16) * 0.2)(D, N)
        C_re = (lambda *s: torch.randn(*s, dtype=torch.bfloat16) * 0.2)(D, N)
        C_im = (lambda *s: torch.randn(*s, dtype=torch.bfloat16) * 0.2)(D, N)
        log_dt = (lambda *s: torch.randn(*s, dtype=torch.bfloat16) * 0.1)(D) * 0.5 - 4.0
        Dskip = (lambda *s: torch.randn(*s, dtype=torch.bfloat16) * 0.1)(D)
        return {
            "u": _w((lambda *s: torch.randn(*s, dtype=torch.bfloat16) * 0.05)(B, L, D)),
            "A_re": _w(A_re),
            "A_im": _w(A_im),
            "B_re": _w(B_re),
            "B_im": _w(B_im),
            "C_re": _w(C_re),
            "C_im": _w(C_im),
            "log_dt": _w(log_dt),
            "Dskip": _w(Dskip),
        }
    _A_in = _A_setup()

    def _B_setup():
        B, S, D, H = 1, 2048, 576, 32
        return {
            "x": _w((lambda *s: torch.randn(*s, dtype=torch.bfloat16) * 0.2)(B, S, D)),
            "wqkv": _w((lambda *s: torch.randn(*s, dtype=torch.bfloat16) * 0.2)(D, 3 * D)),
            "wo": _w((lambda *s: torch.randn(*s, dtype=torch.bfloat16) * 0.05)(D, D)),
        }
    _B_in = _B_setup()

    return {
        "A_u": _A_in["u"],
        "A_A_re": _A_in["A_re"],
        "A_A_im": _A_in["A_im"],
        "A_B_re": _A_in["B_re"],
        "A_B_im": _A_in["B_im"],
        "A_C_re": _A_in["C_re"],
        "A_C_im": _A_in["C_im"],
        "A_log_dt": _A_in["log_dt"],
        "A_Dskip": _A_in["Dskip"],
        "B_x": _B_in["x"],
        "B_wqkv": _B_in["wqkv"],
        "B_wo": _B_in["wo"],
    }

def reference(A_u, A_A_re, A_A_im, A_B_re, A_B_im, A_C_re, A_C_im, A_log_dt, A_Dskip, B_x, B_wqkv, B_wo):
    def _A_ref(u, A_re, A_im, B_re, B_im, C_re, C_im, log_dt, Dskip):
        Bsz, L, D = u.shape
        dt = torch.exp(log_dt)[:, None]
        A = A_re + 1j * A_im
        Bc = B_re + 1j * B_im
        Cc = C_re + 1j * C_im
        logdA = dt * A
        dB = dt * Bc
        l = (lambda x, dt: x.to(dt))(torch.arange(L), A_re.dtype)
        P = torch.exp(logdA[:, :, None] * l[None, None, :])
        K = torch.einsum("dn,dnl,dn->dl", Cc, P, dB).real
        L2 = 2 * L
        Kp = _pad(K, ((0, 0), (0, L)))
        up = (lambda x, *d: x.permute(*d))(u, 0, 2, 1)
        up = _pad(up, ((0, 0), (0, 0), (0, L)))
        Kf = (lambda x, axes=(-2,-1): torch.fft.rfft2(x.float(), dim=axes))(Kp[:, None, :], axes=(-2, -1))
        Uf = (lambda x, axes=(-2,-1): torch.fft.rfft2(x.float(), dim=axes))(up[:, :, None, :], axes=(-2, -1))
        Yf = Uf * Kf[None, :, :, :]
        y = (lambda x, s, axes=(-2,-1): torch.fft.irfft2(x, s=s, dim=axes).to(torch.bfloat16))(Yf, (1, L2), axes=(-2, -1))[:, :, 0, :L]
        y = (lambda x, *d: x.permute(*d))(y, 0, 2, 1) + u * Dskip[None, None, :]
        return y

    def _B_ref(x, wqkv, wo):
        B, S, D = x.shape
        H = 32
        Dh = D // H
        qkv = (lambda x, *d: x.permute(*d))((x @ wqkv).reshape(B, S, 3, H, Dh), 2, 0, 3, 1, 4)
        q, k, v = qkv[0], qkv[1], qkv[2]
        scores = torch.einsum("bhqd,bhkd->bhqk", q, k) * (Dh ** -0.5)
        p = _softmax(scores, axis=-1)
        o = torch.einsum("bhqk,bhkd->bhqd", p, v)
        return (lambda x, *d: x.permute(*d))(o, 0, 2, 1, 3).reshape(B, S, D) @ wo

    a = _A_ref(A_u, A_A_re, A_A_im, A_B_re, A_B_im, A_C_re, A_C_im, A_log_dt, A_Dskip)
    b = _B_ref(B_x, B_wqkv, B_wo)
    return torch.concatenate([a, b], axis=-1)
```

```python
import re

TRANS = ("v_exp_f32", "v_log_f32", "v_rcp_f32", "v_rsq_f32", "v_sqrt_f32", "v_sin_f32", "v_cos_f32")

def regs_of(tok):
    tok = tok.strip()
    tok = tok.replace("abs(", "").replace(")", "").replace("|", "")
    if tok.startswith("-"):
        tok = tok[1:]
    m = re.fullmatch(r"([vsa])\[(\d+):(\d+)\]", tok)
    if m:
        return {f"{m.group(1)}{i}" for i in range(int(m.group(2)), int(m.group(3)) + 1)}
    m = re.fullmatch(r"([vsa])(\d+)", tok)
    if m:
        return {tok}
    if tok == "vcc":
        return {"vcc"}
    if tok in ("vcc_lo", "vcc_hi"):
        return {"vcc"}
    if tok in ("exec", "exec_lo", "exec_hi"):
        return {"exec"}
    if tok == "m0":
        return {"m0"}
    return set()

def mfma_passes(op):
    if "_2b_" in op: return 16
    if "32x32" in op: return 8
    if "16x16" in op: return 4
    raise ValueError(op)

class Ins:
    def __init__(self, text):
        self.text = text
        t = text.split(";")[0].strip()
        self.label = None
        self.op = None
        self.dst = set(); self.src = set()
        self.srcA = set(); self.srcB = set(); self.srcC = set()
        self.kind = "none"
        self.states = 0
        self.target = None
        if not t or t.startswith("."):
            return
        if t.endswith(":"):
            self.label = t[:-1]
            return
        parts = t.split(None, 1)
        op = parts[0]
        self.op = op
        rest = parts[1] if len(parts) > 1 else ""
        ops = []
        cur = ""; depth = 0
        for ch in rest:
            if ch in "[(": depth += 1
            if ch in "])": depth -= 1
            if ch == "," and depth == 0:
                ops.append(cur.strip()); cur = ""
            else:
                cur += ch
        if cur.strip(): ops.append(cur.strip())
        mods = ""
        if ops:
            sp = ops[-1].split(None, 1)
            ops[-1] = sp[0]
            mods = sp[1] if len(sp) > 1 else ""
        self.mods = mods
        self.ops = ops
        self.states = 1
        R = [regs_of(o) for o in ops]
        allr = lambda lst: set().union(*lst) if lst else set()
        if op == "s_nop":
            self.kind = "nop"; self.states = int(ops[0], 0) + 1
        elif op.startswith("v_mfma") or op.startswith("v_smfmac"):
            self.kind = "mfma"; self.passes = mfma_passes(op)
            self.dst = R[0]; self.srcA = R[1]; self.srcB = R[2]
            if op.startswith("v_smfmac"):
                self.srcC = R[0]; self.srcB = R[2] | R[3]
            else:
                self.srcC = R[3]
            self.src = self.srcA | self.srcB | self.srcC
        elif op.startswith("v_"):
            self.kind = "valu"
            self.trans = op.replace("_e32", "").replace("_e64", "") in TRANS
            if op.startswith("v_cmp"):
                self.dst = R[0]; self.src = allr(R[1:])
                if op.startswith("v_cmpx"): self.dst |= {"exec"}
            elif op.startswith("v_permlane") or op.startswith("v_swap"):
                self.dst = R[0] | R[1]; self.src = R[0] | R[1]
            elif op in ("v_add_co_u32", "v_sub_co_u32", "v_addc_co_u32", "v_subb_co_u32"):
                self.dst = R[0] | R[1]; self.src = allr(R[2:])
            elif op.startswith("v_fmac") or op.startswith("v_writelane"):
                self.dst = R[0]; self.src = allr(R)
            elif op == "v_nop":
                pass
            else:
                self.dst = R[0]; self.src = allr(R[1:])
            self.dpp = ("row_" in mods or "quad_perm" in mods or "wave_" in mods)
            self.sdwa_dst = "dst_sel" in mods
        elif op.startswith("ds_"):
            self.kind = "ds"
            if op.startswith("ds_read") or op.startswith("ds_bpermute") or op.startswith("ds_permute") or op.startswith("ds_swizzle") or "_rtn" in op:
                self.dst = R[0]; self.src = allr(R[1:])
            else:
                self.src = allr(R)
        elif op.startswith("buffer_") or op.startswith("global_"):
            self.kind = "vmem"
            self.lds = ("lds" in mods.split()) or ("_lds_" in op)
            self.wide_store = False
            if op in ("buffer_wbl2", "buffer_inv"):
                pass
            elif self.lds:
                self.src = allr(R) | {"m0"}
            elif "load" in op:
                self.dst = R[0]; self.src = allr(R[1:])
                if "d16" in op: self.src |= R[0]
            elif "store" in op:
                self.src = allr(R)
                if "x4" in op or "x3" in op:
                    self.wide_store = True
                    self.sdata = R[0] if op.startswith("buffer_") else R[1]
            elif "atomic" in op:
                if "sc0" in mods.split():
                    self.dst = R[0]
                self.src = allr(R)
        elif op.startswith("s_"):
            self.kind = "salu"
            if op.startswith("s_cbranch") or op == "s_branch":
                self.kind = "branch"; self.target = ops[0]
                if "vcc" in op: self.src = {"vcc"}
                if "exec" in op: self.src = {"exec"}
            elif op in ("s_waitcnt", "s_barrier", "s_endpgm", "s_setprio", "s_sleep"):
                pass
            elif op.startswith("s_cmp"):
                self.src = allr(R)
            elif op.startswith("s_load") or op.startswith("s_memtime") or op.startswith("s_memrealtime"):
                self.kind = "smem"; self.dst = R[0]; self.src = allr(R[1:])
            else:
                self.dst = R[0]; self.src = allr(R[1:])
                if "saveexec" in op: self.dst |= {"exec"}
        else:
            raise ValueError("unknown op " + text)

def isv(r): return r[0] in "va" and r != "vcc"
def iss(r): return r[0] == "s" or r == "vcc"

def required(p, c):
    need = 0
    if p.kind == "valu":
        vd = {r for r in p.dst if isv(r)}
        sd = {r for r in p.dst if iss(r)}
        if c.kind == "mfma" and vd & c.src: need = max(need, 2)
        if c.kind == "mfma" and "exec" in p.dst: need = max(need, 4)
        if c.kind == "valu":
            if c.op.startswith("v_readlane") or c.op.startswith("v_readfirstlane"):
                if vd & c.src: need = max(need, 1)
                if "exec" in p.dst: need = max(need, 4)
            if c.op.startswith("v_permlane") and vd & c.src: need = max(need, 2)
            if c.dpp and vd & c.src: need = max(need, 2)
            if c.dpp and "exec" in p.dst: need = max(need, 5)
            if p.trans and not c.trans and vd & c.src: need = max(need, 1)
            if p.sdwa_dst and vd & (c.src | c.dst): need = max(need, 1)
            if sd & c.src:
                need = max(need, 2)
                if c.op.startswith("v_readlane") or c.op.startswith("v_writelane"): need = max(need, 4)
        if c.kind == "vmem" and sd & c.src: need = max(need, 5)
        if c.kind in ("salu", "branch", "smem") and sd & c.src: need = max(need, 1)
    if p.kind == "salu" and "m0" in p.dst and c.kind == "vmem" and c.lds: need = max(need, 1)
    if p.kind == "vmem" and p.wide_store and (p.sdata & c.dst):
        need = max(need, 2 if c.kind in ("valu", "mfma") else 1)
    if p.kind == "mfma":
        idx = {4: 0, 8: 1, 16: 2}[p.passes]
        if c.kind == "mfma":
            if p.dst & c.srcC:
                if p.dst == c.srcC and p.passes == c.passes: pass
                else: need = max(need, (6, 10, 18)[idx])
            if p.dst & (c.srcA | c.srcB): need = max(need, (8, 12, 20)[idx])
            if (p.dst & c.dst) and not (p.dst & c.srcC):
                if c.passes < p.passes: need = max(need, (6, 10, 18)[idx])
        elif c.kind in ("valu", "vmem", "ds"):
            if p.dst & (c.src | c.dst): need = max(need, (8, 12, 20)[idx])
            if c.kind == "valu" and p.srcC & c.dst: need = max(need, (3, 7, 15)[idx])
    return need

class Asm:
    def __init__(self):
        self.lines = []
    def __call__(self, text):
        for l in text.split("\n"):
            if l.strip(): self.lines.append(l.strip())
    def fix_hazards(self, verbose=True, trans2=False):
        ins = [Ins(l) for l in self.lines]
        changed = True
        total = 0
        while changed:
            changed = False
            labels = {x.label: i for i, x in enumerate(ins) if x.label}
            srcs = {}
            for i, x in enumerate(ins):
                if x.kind == "branch" and x.target in labels:
                    srcs.setdefault(labels[x.target], []).append(i)
            for i, c in enumerate(ins):
                if c.kind in ("none", "nop") : continue
                worst = 0; why = None
                stack = [(i - 1, 0, True)]
                seen = set()
                while stack:
                    j, dist, fall = stack.pop()
                    while j >= 0 and dist < 21:
                        if (j, dist) in seen: break
                        seen.add((j, dist))
                        p = ins[j]
                        if p.label:
                            for b in srcs.get(j, []):
                                stack.append((b, dist, False))
                        if fall and p.op in ("s_branch", "s_endpgm"): break
                        fall = True
                        if p.op:
                            n = required(p, c)
                            if n - dist > worst: worst = n - dist; why = p
                            dist += p.states + (1 if (trans2 and p.kind == "valu" and p.trans) else 0)
                        j -= 1
                if worst > 0:
                    if verbose: print(f"  hazard: +{worst} before [{c.text}] after [{why.text}]")
                    n = worst
                    new = []
                    while n > 0:
                        k = min(n, 16); new.append(Ins(f"s_nop {k-1}")); n -= k
                    ins[i:i] = new
                    total += worst
                    changed = True
                    break
        self.lines = [x.text for x in ins]
        return total
    def text(self):
        out = []
        for l in self.lines:
            out.append(l if (l.endswith(":") or l.startswith(".")) else "    " + l)
        return "\n".join(out) + "\n"
```

```python
import sys, math, struct
from asmlib import Asm

NAME = "concat_heads__ssm_conv_s4__mha_block__prompt"

class Opt:
    mode = "split"
    rot = 1
    stamps = 0
    prio_sw = 5
O = Opt()

def f32(x): return "0x%08x" % struct.unpack("<I", struct.pack("<f", x))[0]
def r(b, n): return f"v[{b}:{b+n-1}]"
def sr(b, n): return f"s[{b}:{b+n-1}]"

WS_F1 = 0
WS_F2 = 4096
WS_ST = 0x4000
WS_Q = 0x40000
QH = 73728
WS_KV = WS_Q + 32 * QH
KVH = 155648
CH = 19456
WS_O = WS_KV + 32 * KVH
WS_END = WS_O + 64 * 36 * 1024
LDS_BYTES = 163840

P_U, P_ARE, P_AIM, P_BRE, P_BIM, P_CRE, P_CIM, P_LDT = 8, 10, 12, 14, 16, 18, 20, 22
P_DSK, P_X, P_W, P_WO, P_OUT, P_DBG, P_WS = 24, 26, 28, 30, 32, 34, 36
S_WAVE, S_XCD, S_J, S_SSM = 38, 39, 40, 41
SRD_X, SRD_W, SRD_WS = 44, 48, 52
S_H, S_T32Q, S_CHAN = 56, 57, 58
V_LANE = 0
V_UG = 216
V_KC = 224
V_PAR = 240

def stamp(a, idx):
    if not O.stamps: return
    a(f"""
    s_memrealtime s[78:79]
    s_lshl_b32 s76, s2, 3
    s_add_u32 s76, s76, s{S_WAVE}
    s_lshl_b32 s76, s76, 6
    s_add_u32 s76, s76, {WS_ST + 4*idx}
    s_waitcnt lgkmcnt(0)
    v_mov_b32 v254, s78
    v_mov_b32 v255, s76
    s_mov_b64 s[74:75], exec
    s_mov_b64 exec, 1
    global_store_dword v255, v254, {sr(P_WS,2)}
    s_mov_b64 exec, s[74:75]
    """)

def setup(a, tag):
    a(f"""
    s_cmp_ge_u32 s2, 256
    s_cbranch_scc1 L_end_{tag}
    s_load_dwordx8 {sr(24,8)}, s[0:1], 64
    s_load_dwordx4 {sr(32,4)}, s[0:1], 96
    s_load_dwordx2 {sr(36,2)}, s[0:1], 112
    s_load_dwordx16 {sr(8,16)}, s[0:1], 0
    v_lshrrev_b32 v1, 6, v0
    v_and_b32 v0, 63, v0
    v_readfirstlane_b32 s{S_WAVE}, v1
    s_and_b32 s{S_XCD}, s2, 7
    s_lshr_b32 s{S_J}, s2, 3
    s_cmp_lt_u32 s{S_J}, 18
    s_cselect_b32 s{S_SSM}, 1, 0
    s_lshl_b32 s{S_H}, s{S_XCD}, 2
    s_lshr_b32 s60, s{S_J}, 3
    s_add_u32 s{S_H}, s{S_H}, s60
    s_and_b32 s60, s{S_J}, 7
    s_lshl_b32 s60, s60, 3
    s_add_u32 s{S_T32Q}, s60, s{S_WAVE}
    s_mul_i32 s{S_CHAN}, s{S_XCD}, 72
    s_lshl_b32 s60, s{S_J}, 2
    s_add_u32 s{S_CHAN}, s{S_CHAN}, s60
    """)

def setup_srds(a):
    a(f"""
    s_waitcnt lgkmcnt(0)
    s_mov_b32 s{SRD_X}, s{P_X}
    s_and_b32 s{SRD_X+1}, s{P_X+1}, 0xffff
    s_mov_b32 s{SRD_X+2}, {2048*1152}
    s_mov_b32 s{SRD_X+3}, 0x20000
    s_mov_b32 s{SRD_W}, s{P_W}
    s_and_b32 s{SRD_W+1}, s{P_W+1}, 0xffff
    s_mov_b32 s{SRD_W+2}, {576*3456}
    s_mov_b32 s{SRD_W+3}, 0x20000
    s_mov_b32 s{SRD_WS}, s{P_WS}
    s_and_b32 s{SRD_WS+1}, s{P_WS+1}, 0xffff
    s_mov_b32 s{SRD_WS+2}, {WS_END}
    s_mov_b32 s{SRD_WS+3}, 0x20000
    """)

def ssm_param_loads(a, tag):
    a(f"""
    s_cmp_eq_u32 s{S_SSM}, 0
    s_cbranch_scc1 L_nopar_{tag}
    s_cmp_lt_u32 s{S_WAVE}, 4
    s_cbranch_scc1 L_nopar_{tag}
    s_add_u32 s60, s{S_CHAN}, s{S_WAVE}
    s_sub_u32 s60, s60, 4
    s_lshl_b32 s61, s60, 8
    v_lshl_add_u32 v1, v0, 2, s61
    s_lshl_b32 s60, s60, 1
    v_mov_b32 v2, s60
    global_load_dword v{V_PAR+0}, v1, {sr(P_ARE,2)}
    global_load_dword v{V_PAR+1}, v1, {sr(P_AIM,2)}
    global_load_dword v{V_PAR+2}, v1, {sr(P_BRE,2)}
    global_load_dword v{V_PAR+3}, v1, {sr(P_BIM,2)}
    global_load_dword v{V_PAR+4}, v1, {sr(P_CRE,2)}
    global_load_dword v{V_PAR+5}, v1, {sr(P_CIM,2)}
    global_load_ushort v{V_PAR+6}, v2, {sr(P_LDT,2)}
    global_load_ushort v{V_PAR+7}, v2, {sr(P_DSK,2)}
L_nopar_{tag}:
    """)

def p1_gemm(a, after_first_barrier=None, before_epilogue=None):
    S_TT, S_G, S_KC, S_SX, S_SW, S_LB = 60, 61, 62, 63, 64, 65
    VX0, VX1, VW0, VW1 = 1, 2, 3, 4
    VRX = 5
    VRW = 9
    VRX2 = 10
    VRW2 = 14
    ACC = 16
    XF = 48
    WF = 80
    a(f"""
    s_and_b32 s{S_TT}, s{S_XCD}, 1
    s_lshl_b32 s{S_TT}, s{S_TT}, 3
    s_and_b32 s66, s{S_J}, 7
    s_add_u32 s{S_TT}, s{S_TT}, s66
    s_lshr_b32 s{S_G}, s{S_XCD}, 1
    s_lshl_b32 s{S_G}, s{S_G}, 2
    s_lshr_b32 s67, s{S_J}, 3
    s_add_u32 s{S_G}, s{S_G}, s67
    """)
    if O.rot:
        a(f"""
    s_lshl_b32 s67, s67, 1
    s_add_u32 s{S_KC}, s67, s66
    s_cmp_ge_u32 s{S_KC}, 9
    s_cselect_b32 s67, 9, 0
    s_sub_u32 s{S_KC}, s{S_KC}, s67
    """)
    else:
        a(f"s_mov_b32 s{S_KC}, 0")
    a(f"""
    s_lshl_b32 s66, s{S_TT}, 7
    s_lshl_b32 s67, s{S_WAVE}, 4
    s_add_u32 s66, s66, s67
    s_mul_i32 s66, s66, 1152
    v_lshrrev_b32 v16, 3, v0
    v_mul_u32_u24 v16, 1152, v16
    v_lshrrev_b32 v17, 4, v0
    v_and_b32 v18, 7, v0
    v_xor_b32 v19, v18, v17
    v_lshlrev_b32 v19, 4, v19
    v_add3_u32 v{VX0}, v16, v19, s66
    v_xor_b32 v19, 64, v19
    s_add_u32 s66, s66, {8*1152}
    v_add3_u32 v{VX1}, v16, v19, s66
    v_bfe_u32 v18, v0, 2, 2
    v_xor_b32 v18, v18, v17
    v_and_b32 v19, 3, v0
    v_mul_u32_u24 v20, 72, v18
    v_lshl_add_u32 v20, v19, 4, v20
    v_and_b32 v21, 2, v19
    v_lshl_add_u32 v20, v21, 2, v20
    v_min_u32 v19, 2, v19
    v_mul_u32_u24 v19, 72, v19
    v_add_u32 v19, 32, v19
    v_cmp_eq_u32 vcc, 3, v18
    s_mul_i32 s66, s{S_G}, 216
    s_mul_i32 s67, s{S_WAVE}, {8*3456}
    s_add_u32 s66, s66, s67
    v_cndmask_b32 v20, v20, v19, vcc
    v_mul_u32_u24 v17, 3456, v17
    v_add3_u32 v{VW0}, v17, v20, s66
    v_add_u32 v{VW1}, {4*3456}, v{VW0}
    s_lshl_b32 s{S_LB}, s{S_WAVE}, 11
    """)
    def issue(ci):
        so = (ci & 3) * 32768
        a(f"""
    s_lshl_b32 s{S_SX}, s{S_KC}, 7
    s_mul_i32 s{S_SW}, s{S_KC}, {64*3456}
    s_add_u32 m0, s{S_LB}, {so}
    s_add_u32 s{S_KC}, s{S_KC}, 1
    buffer_load_dwordx4 v{VX0}, {sr(SRD_X,4)}, s{S_SX} offen lds
    s_add_u32 m0, s{S_LB}, {so+1024}
    s_cmp_eq_u32 s{S_KC}, 9
    buffer_load_dwordx4 v{VX1}, {sr(SRD_X,4)}, s{S_SX} offen lds
    s_cselect_b32 s{S_KC}, 0, s{S_KC}
    s_add_u32 m0, s{S_LB}, {so+16384}
    s_nop 0
    buffer_load_dwordx4 v{VW0}, {sr(SRD_W,4)}, s{S_SW} offen lds
    s_add_u32 m0, s{S_LB}, {so+16384+1024}
    s_nop 0
    buffer_load_dwordx4 v{VW1}, {sr(SRD_W,4)}, s{S_SW} offen lds
    """)
    for ci in range(3): issue(ci)
    a(f"""
    s_and_b32 s66, s{S_WAVE}, 3
    s_lshr_b32 s67, s{S_WAVE}, 2
    s_lshl_b32 s68, s67, 13
    v_and_b32 v16, 31, v0
    v_lshlrev_b32 v17, 7, v16
    v_add_u32 v17, s68, v17
    v_bfe_u32 v18, v0, 1, 3
    v_lshrrev_b32 v19, 5, v0
    v_xor_b32 v18, v18, v19
    v_lshlrev_b32 v18, 4, v18
    """)
    for ks in range(4):
        a(f"""
    v_xor_b32 v20, {32*ks}, v18
    v_add_u32 v{VRX+ks}, v17, v20
    v_add_u32 v{VRX2+ks}, 0x10000, v{VRX+ks}
    """)
    a(f"""
    v_bfe_u32 v16, v0, 2, 2
    v_lshl_add_u32 v17, v19, 3, v16
    v_lshlrev_b32 v17, 8, v17
    v_xor_b32 v16, s66, v16
    v_lshl_add_u32 v17, v16, 6, v17
    v_and_b32 v16, 3, v0
    v_and_b32 v18, 16, v0
    v_lshlrev_b32 v18, 1, v18
    v_lshl_add_u32 v18, v16, 3, v18
    v_lshlrev_b32 v16, 4, v16
    s_cmp_eq_u32 s66, 3
    s_cselect_b64 vcc, -1, 0
    v_cndmask_b32 v16, v18, v16, vcc
    v_add_u32 v17, 16384, v17
    v_add_u32 v{VRW}, v17, v16
    v_add_u32 v{VRW2}, 0x10000, v{VRW}
    """)
    for c in range(9):
        s = c & 3
        so = (s & 1) * 32768
        rx = VRX if s < 2 else VRX2
        rw = VRW if s < 2 else VRW2
        a(f"s_waitcnt vmcnt({4*min(2, 8-c)})")
        a("s_barrier")
        if c == 0 and after_first_barrier: after_first_barrier()
        def reads(ks):
            a(f"""
    ds_read_b64_tr_b16 {r(WF+4*ks,2)}, v{rw} offset:{so+4096*ks}
    ds_read_b64_tr_b16 {r(WF+4*ks+2,2)}, v{rw} offset:{so+4096*ks+1024}
    ds_read_b128 {r(XF+8*ks,4)}, v{rx+ks} offset:{so}
    ds_read_b128 {r(XF+8*ks+4,4)}, v{rx+ks} offset:{so+4096}
    """)
        reads(0); reads(1)
        if c + 3 <= 8: issue(c + 3)
        reads(2)
        for ks in range(4):
            if ks == 0:
                a("s_waitcnt lgkmcnt(8)")
            elif ks == 1:
                reads(3)
                a("s_waitcnt lgkmcnt(8)")
            elif ks == 2:
                a("s_waitcnt lgkmcnt(4)")
            else:
                a("s_waitcnt lgkmcnt(0)")
            for t in range(2):
                cin = "0" if (c == 0 and ks == 0) else r(ACC+16*t, 16)
                a(f"v_mfma_f32_32x32x16_bf16 {r(ACC+16*t,16)}, {r(WF+4*ks,4)}, {r(XF+8*ks+4*t,4)}, {cin}")
    if before_epilogue: before_epilogue()
    S_T32, S_SLOT, S_B, S_HS, S_TS, S_TY, S_SC = 62, 63, 64, 65, 68, 69, 70
    def addr(extra):
        a(f"""
    s_lshr_b32 s{S_TY}, s{S_SLOT}, 5
    s_and_b32 s71, s{S_SLOT}, 31
    s_lshr_b32 s72, s{S_T32}, 3
    s_mov_b32 s{S_HS}, {KVH}
    s_mov_b32 s73, {CH}
    s_mov_b32 s{S_TS}, {128 if extra else 1024}
    s_mov_b32 s{S_B}, {WS_KV + (8192 if extra else 0)}
    s_cmp_eq_u32 s{S_TY}, 0
    s_cmov_b32 s{S_HS}, {QH}
    s_cselect_b32 s{S_SC}, {f32(math.log2(math.e)/math.sqrt(18.0))}, 1.0
    s_cmov_b32 s73, {8*1152}
    s_cmov_b32 s{S_TS}, 1152
    s_cmov_b32 s{S_B}, {WS_Q + (1024 if extra else 0)}
    s_cmp_eq_u32 s{S_TY}, 2
    s_cmov_b32 s{S_TS}, 1280
    s_cmov_b32 s{S_B}, {WS_KV + 9216}
    s_mul_i32 s71, s71, s{S_HS}
    s_mul_i32 s72, s72, s73
    s_add_u32 s{S_B}, s{S_B}, s71
    s_add_u32 s{S_B}, s{S_B}, s72
    s_and_b32 s72, s{S_T32}, 7
    s_mul_i32 s72, s72, s{S_TS}
    s_add_u32 s{S_B}, s{S_B}, s72
    """)
    a(f"""
    s_lshl_b32 s{S_T32}, s{S_TT}, 2
    s_lshl_b32 s67, s67, 1
    s_add_u32 s{S_T32}, s{S_T32}, s67
    s_mul_i32 s{S_SLOT}, s{S_G}, 6
    v_and_b32 v1, 31, v0
    v_lshrrev_b32 v2, 2, v1
    v_mul_u32_u24 v2, 160, v2
    v_and_b32 v3, 3, v0
    s_cmp_eq_u32 s66, 3
    s_cbranch_scc1 L_p1_extra
    s_lshl_b32 s66, s66, 1
    s_add_u32 s{S_SLOT}, s{S_SLOT}, s66
    """)
    addr(False)
    a(f"""
    v_lshl_add_u32 v2, v3, 5, v2
    v_lshrrev_b32 v3, 5, v0
    v_lshl_add_u32 v2, v3, 4, v2
    v_lshlrev_b32 v3, 4, v0
    s_cmp_eq_u32 s{S_TY}, 2
    s_cselect_b64 vcc, -1, 0
    v_cndmask_b32 v1, v3, v2, vcc
    s_add_u32 s71, s{S_B}, s{S_HS}
    s_add_u32 s72, s{S_B}, s{S_TS}
    s_add_u32 s73, s71, s{S_TS}
    """)
    for t in range(2):
        for sl in range(2):
            b = ACC + 16*t + 8*sl
            for i in range(8): a(f"v_mul_f32 v{b+i}, s{S_SC}, v{b+i}")
            d = XF + 8*t + 4*sl
            for i in range(4): a(f"v_cvt_pk_bf16_f32 v{d+i}, v{b+2*i}, v{b+2*i+1}")
            so = [[S_B, 71], [72, 73]][t][sl]
            a(f"buffer_store_dwordx4 {r(d,4)}, v1, {sr(SRD_WS,4)}, s{so} offen sc1")
    a("s_branch L_p1_done")
    a("L_p1_extra:")
    a(f"""
    v_lshl_add_u32 v2, v3, 3, v2
    v_add_u32 v2, 128, v2
    v_lshlrev_b32 v1, 2, v1
    """)
    for i in range(4): a(f"v_mov_b32 v{XF+2*i+1}, 0x3f803f80")
    for p in range(3):
        addr(True)
        rb = 0 if p < 2 else 4
        for t in range(2):
            b = ACC + 16*t + rb
            for i in range(4): a(f"v_mul_f32 v{80+4*t+i}, s{S_SC}, v{b+i}")
            a(f"v_cvt_pk_bf16_f32 v{XF+4*t}, v{80+4*t}, v{81+4*t}")
            a(f"v_cvt_pk_bf16_f32 v{XF+4*t+2}, v{82+4*t}, v{83+4*t}")
        a(f"""
    s_add_u32 s71, s{S_B}, s{S_HS}
    s_add_u32 s72, s{S_B}, s{S_TS}
    s_add_u32 s73, s71, s{S_TS}
    s_mov_b32 exec_lo, {0 if p == 1 else -1}
    s_mov_b32 exec_hi, {-1 if p == 1 else 0}
    s_cmp_eq_u32 s{S_TY}, 2
    s_cbranch_scc1 L_p1_xv{p}
    buffer_store_dword v{XF}, v1, {sr(SRD_WS,4)}, s{S_B} offen sc1
    buffer_store_dword v{XF+2}, v1, {sr(SRD_WS,4)}, s71 offen sc1
    buffer_store_dword v{XF+4}, v1, {sr(SRD_WS,4)}, s72 offen sc1
    buffer_store_dword v{XF+6}, v1, {sr(SRD_WS,4)}, s73 offen sc1
    s_branch L_p1_xe{p}
L_p1_xv{p}:
    buffer_store_dwordx2 {r(XF,2)}, v2, {sr(SRD_WS,4)}, s{S_B} offen sc1
    buffer_store_dwordx2 {r(XF+2,2)}, v2, {sr(SRD_WS,4)}, s71 offen sc1
    buffer_store_dwordx2 {r(XF+4,2)}, v2, {sr(SRD_WS,4)}, s72 offen sc1
    buffer_store_dwordx2 {r(XF+6,2)}, v2, {sr(SRD_WS,4)}, s73 offen sc1
L_p1_xe{p}:
    s_mov_b64 exec, -1
    s_add_u32 s{S_SLOT}, s{S_SLOT}, 2
    """)
    a("L_p1_done:")

def u_gather(a):
    a(f"""
    s_lshl_b32 s60, s{S_WAVE}, 8
    s_mul_i32 s60, s60, 1152
    s_lshl_b32 s61, s{S_CHAN}, 1
    s_add_u32 s60, s60, s61
    v_mul_u32_u24 v{V_UG}, {4*1152}, v0
    v_add_u32 v{V_UG}, s60, v{V_UG}
    global_load_dwordx2 {r(V_UG+6,2)}, v{V_UG}, {sr(P_U,2)} offset:{3*1152}
    global_load_dwordx2 {r(V_UG+4,2)}, v{V_UG}, {sr(P_U,2)} offset:{2*1152}
    global_load_dwordx2 {r(V_UG+2,2)}, v{V_UG}, {sr(P_U,2)} offset:{1152}
    global_load_dwordx2 {r(V_UG,2)}, v{V_UG}, {sr(P_U,2)}
    """)

def p2_attn(a, gather):
    VK, VKX, VV, VIDX = 1, 2, 3, 4
    Q, QX, OA = 8, 12, 16
    S2 = [32, 64]
    K = [96, 100]; KX = 104; V = [108, 116]
    S_C, S_M = 62, 63
    a(f"""
    s_mul_i32 s60, s{S_H}, {QH}
    s_mul_i32 s61, s{S_T32Q}, 1152
    s_add_u32 s60, s60, s61
    s_add_u32 s60, s60, {WS_Q}
    v_lshlrev_b32 v{VK}, 4, v0
    v_and_b32 v5, 31, v0
    v_lshlrev_b32 v6, 2, v5
    buffer_load_dwordx4 {r(Q,4)}, v{VK}, {sr(SRD_WS,4)}, s60 offen sc1
    buffer_load_dword v{QX}, v6, {sr(SRD_WS,4)}, s60 offen offset:1024 sc1
    s_mul_i32 s60, s{S_H}, {KVH}
    s_add_u32 s60, s60, {WS_KV}
    v_add_u32 v7, s60, v{VK}
    s_lshl_b32 m0, s{S_WAVE}, 10
    """)
    for i in range(19):
        a(f"buffer_load_dwordx4 v7, {sr(SRD_WS,4)}, m0 offen sc1 lds")
        if i < 18: a("s_add_u32 m0, m0, 8192")
    a(f"""
    v_lshlrev_b32 v{VKX}, 2, v0
    v_lshrrev_b32 v6, 5, v0
    v_mul_u32_u24 v{VV}, 320, v6
    v_bfe_u32 v6, v0, 2, 2
    v_and_b32 v7, 3, v0
    v_lshlrev_b32 v14, 5, v6
    v_lshl_add_u32 v14, v7, 3, v14
    v_lshlrev_b32 v15, 3, v6
    v_add_u32 v15, 128, v15
    v_and_b32 v7, 16, v0
    v_cmp_ne_u32 vcc, 0, v7
    v_mov_b32 v{VIDX}, 0xdddddddd
    v_mov_b32 v{KX+1}, 0x3f80
    v_cndmask_b32 v14, v14, v15, vcc
    v_add_u32 v{VV}, v{VV}, v14
    v_mov_b32 v{QX+1}, 0
    """)
    for i in range(16): a(f"v_mov_b32 v{OA+i}, 0")
    for i in range(8): a(f"v_mov_b32 v{S2[1]+24+i}, 0")
    for i in range(4): a(f"v_mov_b32 v{V[1]+4+i}, 0")
    a(f"""
    s_cmp_lt_u32 s{S_WAVE}, 4
    s_cbranch_scc1 L_att_noprio
    s_setprio 1
L_att_noprio:
    s_waitcnt vmcnt(16)
    s_barrier
    """)
    stamp(a, 6)
    koff = lambda tile: (tile // 8) * CH + 1024 * (tile % 8)
    xoff = lambda pair: (pair // 4) * CH + 8192 + 256 * (pair % 4)
    voff = lambda tile, q: (tile // 8) * CH + 9216 + 1280 * (tile % 8) + [0, 160, 640, 800][q]
    A0 = S2[0]
    a(f"""
    ds_read_b32 v{KX}, v{VKX} offset:{xoff(0)}
    ds_read_b128 {r(K[0],4)}, v{VK} offset:{koff(0)}
    ds_read_b128 {r(K[1],4)}, v{VK} offset:{koff(1)}
    """)
    for t in range(2):
        for q in range(4):
            if t == 1 and q >= 2: continue
            a(f"ds_read_b64_tr_b16 {r(V[t]+2*q,2)}, v{VV} offset:{voff(t,q)}")
    a(f"""
    s_waitcnt lgkmcnt(8)
    v_mfma_f32_32x32x4_2b_bf16 {r(A0,32)}, {r(KX,2)}, {r(QX,2)}, 0
    s_waitcnt lgkmcnt(6)
    v_mfma_f32_32x32x16_bf16 {r(A0,16)}, {r(K[0],4)}, {r(Q,4)}, {r(A0,16)}
    v_mfma_f32_32x32x16_bf16 {r(A0+16,16)}, {r(K[1],4)}, {r(Q,4)}, {r(A0+16,16)}
    v_max3_f32 v5, v{A0}, v{A0+1}, v{A0+2}
    """)
    for i in range(3, 31, 2): a(f"v_max3_f32 v5, v5, v{A0+i}, v{A0+i+1}")
    a(f"""
    v_max_f32 v5, v5, v{A0+31}
    v_mov_b32 v6, v5
    v_permlane32_swap_b32 v5, v6
    v_max_f32 v5, v5, v6
    v_lshrrev_b32 v5, 16, v5
    v_xor_b32 v{QX+1}, 0x8000, v5
    v_mfma_f32_32x32x4_2b_bf16 {r(A0,32)}, {r(KX,2)}, {r(QX,2)}, 0
    ds_read_b32 v{KX}, v{VKX} offset:{xoff(1)}
    v_mfma_f32_32x32x16_bf16 {r(A0,16)}, {r(K[0],4)}, {r(Q,4)}, {r(A0,16)}
    ds_read_b128 {r(K[0],4)}, v{VK} offset:{koff(2)}
    v_mfma_f32_32x32x16_bf16 {r(A0+16,16)}, {r(K[1],4)}, {r(Q,4)}, {r(A0+16,16)}
    ds_read_b128 {r(K[1],4)}, v{VK} offset:{koff(3)}
    s_mov_b32 s{S_C}, 0
    s_waitcnt lgkmcnt(0)
    s_nop 7
    """)
    tmpl = "eeAeeeeBx67eeeeeeeewD01eeeeCkeeeeF23eeeeEleeeeG45ee"
    def pair(p):
        x = S2[p & 1]; b = S2[(p + 1) & 1]
        ops = {
            'A': f"v_smfmac_f32_32x32x32_bf16 {r(OA,16)}, {r(V[1]+4,4)}, {r(b+24,8)}, v{VIDX}",
            'B': f"v_mfma_f32_32x32x4_2b_bf16 {r(b,32)}, {r(KX,2)}, {r(QX,2)}, 0",
            'C': f"v_mfma_f32_32x32x16_bf16 {r(b,16)}, {r(K[0],4)}, {r(Q,4)}, {r(b,16)}",
            'E': f"v_mfma_f32_32x32x16_bf16 {r(b+16,16)}, {r(K[1],4)}, {r(Q,4)}, {r(b+16,16)}",
            'D': f"v_smfmac_f32_32x32x32_bf16 {r(OA,16)}, {r(V[0],4)}, {r(x,8)}, v{VIDX}",
            'F': f"v_smfmac_f32_32x32x32_bf16 {r(OA,16)}, {r(V[0]+4,4)}, {r(x+8,8)}, v{VIDX}",
            'G': f"v_smfmac_f32_32x32x32_bf16 {r(OA,16)}, {r(V[1],4)}, {r(x+16,8)}, v{VIDX}",
            'k': f"ds_read_b128 {r(K[0],4)}, v{VK} offset:{koff(2*p+4)}",
            'l': f"ds_read_b128 {r(K[1],4)}, v{VK} offset:{koff(2*p+5)}",
            'x': f"ds_read_b32 v{KX}, v{VKX} offset:{xoff(p+2)}",
            'w': "s_waitcnt lgkmcnt(0)",
        }
        for i in range(8):
            t, q = i // 4, i % 4
            tile = 2*p + 1 if i >= 6 else 2*p + 2 + t
            ops[str(i)] = f"ds_read_b64_tr_b16 {r(V[t]+2*q,2)}, v{VV} offset:{voff(tile,q)}"
        e = 0
        for ch in tmpl:
            if ch == 'e':
                a(f"v_exp_f32 v{x+e}, v{x+e}"); e += 1
            else:
                a(ops[ch])
        assert e == 32
    a(".p2align 6")
    a("L_att_loop:")
    pair(0); pair(1)
    a(f"""
    s_cmp_gt_u32 s{S_C}, {max(4, O.prio_sw)}
    s_cbranch_scc1 L_att_mid
    s_cmp_lg_u32 s{S_C}, 0
    s_cbranch_scc1 L_att_m1
    s_waitcnt vmcnt(11)
    s_barrier
L_att_m1:
    s_cmp_lg_u32 s{S_C}, 2
    s_cbranch_scc1 L_att_m2
    s_waitcnt vmcnt(0)
    s_barrier
L_att_m2:
    s_cmp_lg_u32 s{S_C}, {O.prio_sw}
    s_cbranch_scc1 L_att_m3
    s_setprio 0
L_att_m3:
    """)
    if gather:
        a(f"""
    s_cmp_lg_u32 s{S_C}, 3
    s_cbranch_scc1 L_att_mid
    s_cmp_eq_u32 s{S_SSM}, 0
    s_cbranch_scc1 L_att_mid
    """)
        u_gather(a)
    a("L_att_mid:")
    pair(2); pair(3)
    a(f"""
    v_add_u32 v{VK}, {CH}, v{VK}
    v_add_u32 v{VKX}, {CH}, v{VKX}
    v_add_u32 v{VV}, {CH}, v{VV}
    s_add_u32 s{S_C}, s{S_C}, 1
    s_cmp_lt_u32 s{S_C}, 8
    s_cbranch_scc1 L_att_loop
    v_smfmac_f32_32x32x32_bf16 {r(OA,16)}, {r(V[1]+4,4)}, {r(S2[1]+24,8)}, v{VIDX}
    s_waitcnt lgkmcnt(0)
    """)
    stamp(a, 7)
    a(f"v_add_f32 v5, abs(v{OA}), abs(v{OA+1})")
    for i in range(2, 11): a(f"v_add_f32 v5, v5, abs(v{OA+i})")
    a(f"""
    v_cmp_ngt_f32 vcc, {f32(2.0**120)}, v5
    s_cbranch_vccnz L_att_slow
L_att_fin:
    v_rcp_f32 v5, v{OA+10}
    v_lshlrev_b32 v6, 4, v0
    v_and_b32 v7, 31, v0
    s_mul_i32 s60, s{S_T32Q}, {36*1024}
    s_add_u32 s60, s60, {WS_O}
    s_lshl_b32 s61, s{S_H}, 10
    s_add_u32 s61, s61, s60
    s_lshr_b32 s64, s{S_H}, 3
    s_lshl_b32 s64, s64, 10
    s_add_u32 s60, s60, s64
    s_and_b32 s64, s{S_H}, 4
    s_lshl_b32 s64, s64, 7
    s_add_u32 s60, s60, s64
    s_and_b32 s64, s{S_H}, 3
    s_lshl_b32 s64, s64, 2
    s_add_u32 s60, s60, s64
    s_add_u32 s60, s60, {32*1024}
    v_lshlrev_b32 v7, 4, v7
    """)
    for i in range(10): a(f"v_mul_f32 v{OA+i}, v5, v{OA+i}")
    for i in range(5): a(f"v_cvt_pk_bf16_f32 v{32+i}, v{OA+2*i}, v{OA+2*i+1}")
    a(f"""
    buffer_store_dwordx4 {r(32,4)}, v6, {sr(SRD_WS,4)}, s61 offen sc1
    s_mov_b32 exec_hi, 0
    buffer_store_dword v36, v7, {sr(SRD_WS,4)}, s60 offen sc1
    s_mov_b32 exec_hi, -1
    """)
    def slow():
        M = 5
        a("L_att_slow:")
        a(f"""
    v_mov_b32 v{QX+1}, 0
    v_mov_b32 v{M}, 0xff800000
    s_mov_b32 s{S_M}, 0
L_slow_pass:
    v_subrev_u32 v{VK}, {8*CH}, v{VK}
    v_subrev_u32 v{VKX}, {8*CH}, v{VKX}
    v_subrev_u32 v{VV}, {8*CH}, v{VV}
    s_mov_b32 s{S_C}, 0
L_slow_loop:
    ds_read_b32 v{KX}, v{VKX} offset:{xoff(0)}
    ds_read_b128 {r(K[0],4)}, v{VK} offset:{koff(0)}
    ds_read_b128 {r(K[1],4)}, v{VK} offset:{koff(1)}
    """)
        for t in range(2):
            for q in range(4):
                a(f"ds_read_b64_tr_b16 {r(V[t]+2*q,2)}, v{VV} offset:{voff(t,q)}")
        a(f"""
    s_waitcnt lgkmcnt(0)
    v_mfma_f32_32x32x4_2b_bf16 {r(A0,32)}, {r(KX,2)}, {r(QX,2)}, 0
    v_mfma_f32_32x32x16_bf16 {r(A0,16)}, {r(K[0],4)}, {r(Q,4)}, {r(A0,16)}
    v_mfma_f32_32x32x16_bf16 {r(A0+16,16)}, {r(K[1],4)}, {r(Q,4)}, {r(A0+16,16)}
    s_cmp_eq_u32 s{S_M}, 0
    s_cbranch_scc0 L_slow_p2
    """)
        for i in range(0, 32, 2): a(f"v_max3_f32 v{M}, v{M}, v{A0+i}, v{A0+i+1}")
        a("s_branch L_slow_next")
        a("L_slow_p2:")
        for i in range(32): a(f"v_sub_f32 v{A0+i}, v{A0+i}, v{M}")
        for i in range(32): a(f"v_exp_f32 v{A0+i}, v{A0+i}")
        for i in range(4):
            a(f"v_smfmac_f32_32x32x32_bf16 {r(OA,16)}, {r(V[i//2]+4*(i%2),4)}, {r(A0+8*i,8)}, v{VIDX}")
        a(f"""
L_slow_next:
    s_add_u32 s{S_C}, s{S_C}, 1
    s_and_b32 s64, s{S_C}, 3
    s_cmp_eq_u32 s64, 0
    s_mov_b32 s64, 2048
    s_mov_b32 s65, 256
    s_mov_b32 s66, 2560
    s_cmov_b32 s64, {CH - 3*2048}
    s_cmov_b32 s65, {CH - 3*256}
    s_cmov_b32 s66, {CH - 3*2560}
    v_add_u32 v{VK}, s64, v{VK}
    v_add_u32 v{VKX}, s65, v{VKX}
    v_add_u32 v{VV}, s66, v{VV}
    s_cmp_lt_u32 s{S_C}, 32
    s_cbranch_scc1 L_slow_loop
    s_cmp_eq_u32 s{S_M}, 0
    s_cbranch_scc0 L_att_fin
    v_mov_b32 v6, v{M}
    v_permlane32_swap_b32 v{M}, v6
    v_max_f32 v{M}, v{M}, v6
    """)
        for i in range(16): a(f"v_mov_b32 v{OA+i}, 0")
        a(f"""
    s_mov_b32 s{S_M}, 1
    s_branch L_slow_pass
    """)
    return slow


ROWS0 = [0,1,2,3,4,5,6,7,8, 512,516,520, 1024,1032, 1280,1288]
ROWS1 = [256,256,258,260,260,260,262,264,264, 768,772,776, 1536,1544, 1792,1800]
def kgen(a):
    a(f"""
    s_cmp_eq_u32 s{S_SSM}, 0
    s_cbranch_scc1 L_kgen_end
    s_cmp_lt_u32 s{S_WAVE}, 4
    s_cbranch_scc1 L_kgen_end
    """)
    RS = 528
    VA = 1; DT = 2
    def base(s): return 100 + 40 * s
    Z1, Z2, Z4, Z8, Z256, W, H, X, T = 0, 2, 4, 6, 8, 10, 12, 14, 16
    AR, TH, BR, BI, CR, CI, t0, t1, t2 = 18, 19, 20, 21, 22, 23, 24, 25, 26
    PK = 96
    a(f"""
    s_sub_u32 s60, s{S_WAVE}, 4
    s_mul_i32 s60, s60, {64*RS}
    v_lshl_add_u32 v{VA}, v0, 3, s60
    v_lshlrev_b32 v{DT}, 16, v{V_PAR+6}
    v_mul_f32 v{DT}, {f32(math.log2(math.e))}, v{DT}
    v_exp_f32 v{DT}, v{DT}
    s_nop 0
    v_cvt_pk_bf16_f32 v{DT}, v{DT}, v{DT}
    v_and_b32 v{DT}, 0xffff0000, v{DT}
    """)
    for s in range(2):
        b = base(s)
        for k, dst in enumerate((AR, TH, BR, BI, CR, CI)):
            if s == 0: a(f"v_lshlrev_b32 v{b+dst}, 16, v{V_PAR+k}")
            else: a(f"v_and_b32 v{b+dst}, 0xffff0000, v{V_PAR+k}")
    for s in range(2):
        b = base(s)
        for dst in (AR, TH, BR, BI): a(f"v_mul_f32 v{b+dst}, v{DT}, v{b+dst}")
        a(f"""
    v_mul_f32 v{b+AR}, {f32(math.log2(math.e))}, v{b+AR}
    v_mul_f32 v{b+TH}, 0.15915494, v{b+TH}
    v_mul_f32 v{b+W}, v{b+CR}, v{b+BR}
    v_mul_f32 v{b+W+1}, v{b+CR}, v{b+BI}
    v_fma_f32 v{b+W}, -v{b+CI}, v{b+BI}, v{b+W}
    v_fma_f32 v{b+W+1}, v{b+CI}, v{b+BR}, v{b+W+1}
    """)
    for p, Z in ((1, Z1), (8, Z8), (256, Z256)):
        for s in range(2):
            b = base(s)
            a(f"""
    v_mul_f32 v{b+t0}, {f32(float(p))}, v{b+AR}
    v_mul_f32 v{b+t1}, {f32(float(p))}, v{b+TH}
    v_exp_f32 v{b+t0}, v{b+t0}
    v_fract_f32 v{b+t1}, v{b+t1}
    v_cos_f32 v{b+t2}, v{b+t1}
    v_sin_f32 v{b+t1}, v{b+t1}
    v_mul_f32 v{b+Z}, v{b+t0}, v{b+t2}
    v_mul_f32 v{b+Z+1}, v{b+t0}, v{b+t1}
    """)
    def cmul(D, Xr, Z):
        for s in range(2):
            b = base(s)
            a(f"v_pk_mul_f32 {r(b+T,2)}, {r(b+Xr,2)}, {r(b+Z,2)} op_sel:[0,0] op_sel_hi:[1,0]")
        for s in range(2):
            b = base(s)
            a(f"v_pk_fma_f32 {r(b+D,2)}, {r(b+Xr,2)}, {r(b+Z,2)}, {r(b+T,2)} op_sel:[1,1,0] op_sel_hi:[0,1,1] neg_lo:[1,0,0]")
    cnt = [0]
    def emit(rows, Xr):
        pk = PK + 2 * (cnt[0] & 1); cnt[0] += 1
        for s in range(2):
            b = base(s)
            a(f"v_cvt_pk_bf16_f32 v{pk+s}, v{b+Xr}, v{b+Xr+1}")
        for row in rows:
            a(f"ds_write_b64 v{VA}, {r(pk,2)} offset:{row*RS}")
    def slots(rho):
        out = []
        for h, lst in enumerate((ROWS0, ROWS1)):
            for idx, v in enumerate(lst):
                if v == rho: out.append(8 * (idx >> 2) + 4 * h + (idx & 3))
        assert out, rho
        return out
    cmul(Z2, Z1, Z1); cmul(Z4, Z2, Z2)
    emit(slots(0), W)
    cmul(X, W, Z1); emit(slots(1), X)
    for rho in range(2, 9):
        cmul(X, X, Z1); emit(slots(rho), X)
    for m in range(1, 8):
        cmul(H, W if m == 1 else H, Z256); emit(slots(256*m), H)
        step, Z = (2, Z2) if m == 1 else ((4, Z4) if m < 4 else (8, Z8))
        src = H
        for off in range(step, 9, step):
            cmul(X, src, Z); emit(slots(256*m + off), X); src = X
    for s in range(2):
        b = base(s)
        a(f"v_xor_b32 v{b+Z8+1}, 0x80000000, v{b+Z8+1}")
    a(f"""
    v_mov_b32 v{PK}, 0x3f80
    v_mov_b32 v{PK+1}, 0x3f80
    ds_write_b64 v{VA}, {r(PK,2)} offset:{32*RS}
    """)
    cnt[0] = 1
    emit([33], Z8)
    cmul(X, Z8, Z8); emit([34], X)
    for bb in range(3, 32):
        cmul(X, X, Z8); emit([32 + bb], X)
    a(f"""
    v_and_b32 v2, 31, v0
    v_mul_u32_u24 v2, {RS}, v2
    v_lshrrev_b32 v3, 5, v0
    v_lshlrev_b32 v3, 4, v3
    v_add3_u32 v2, v2, v3, s60
    """)
    FB = [16, 48]
    def rd(bt):
        for st in range(4):
            t = 4 * bt + st
            a(f"ds_read_b128 {r(FB[bt&1]+8*st,4)}, v2 offset:{32*t}")
            a(f"ds_read_b128 {r(FB[bt&1]+8*st+4,4)}, v2 offset:{32*RS+32*t}")
    rd(0)
    for bt in range(4):
        a("s_waitcnt lgkmcnt(0)")
        if bt < 3: rd(bt + 1)
        for st in range(4):
            cin = "0" if (bt == 0 and st == 0) else r(V_KC, 16)
            a(f"v_mfma_f32_32x32x16_bf16 {r(V_KC,16)}, {r(FB[bt&1]+8*st,4)}, {r(FB[bt&1]+8*st+4,4)}, {cin}")
    a(f"""
    v_lshlrev_b32 v2, 16, v{V_PAR+7}
    v_cmp_eq_u32 vcc, 0, v0
    v_cndmask_b32 v2, 0, v2, vcc
    v_add_f32 v{V_KC}, v{V_KC}, v2
L_kgen_end:
    """)

T_RED = 73728
T_SSM = 106496
T_CS = 12928
T_E = 4608
T_O = 4608 + 4160
T_FLAG = T_SSM + 4 * T_CS

def tail(a, mega):
    S_NT, S_MT, S_WQ, S_DBL = 60, 61, 62, 63
    a(f"""
    s_barrier
    s_and_b32 s{S_WQ}, s{S_WAVE}, 3
    s_cmp_ge_u32 s{S_J}, 28
    s_cselect_b32 s{S_DBL}, 1, 0
    s_cbranch_scc1 L_t_dbl
    s_lshr_b32 s{S_NT}, s{S_J}, 2
    s_add_u32 s{S_NT}, s{S_NT}, 2
    s_and_b32 s{S_MT}, s{S_J}, 3
    s_branch L_t_map
L_t_dbl:
    s_bfe_u32 s{S_NT}, s{S_J}, 0x10001
    s_and_b32 s{S_MT}, s{S_J}, 1
    s_lshl_b32 s{S_MT}, s{S_MT}, 1
    s_lshr_b32 s64, s{S_WAVE}, 2
    s_add_u32 s{S_MT}, s{S_MT}, s64
L_t_map:
    s_cmp_ge_u32 s{S_WAVE}, 4
    s_cbranch_scc1 L_t_nodma
    s_mov_b32 s{SRD_W}, s{P_WO}
    s_and_b32 s{SRD_W+1}, s{P_WO+1}, 0xffff
    s_mov_b32 s{SRD_W+2}, {576*1152}
    s_mov_b32 s{SRD_W+3}, 0x20000
    v_lshrrev_b32 v1, 3, v0
    v_and_b32 v2, 7, v0
    v_and_b32 v3, 16, v0
    v_lshrrev_b32 v3, 2, v3
    v_xor_b32 v2, v2, v3
    v_lshlrev_b32 v2, 4, v2
    v_mul_u32_u24 v4, 1152, v1
    v_add_u32 v4, v4, v2
    v_lshrrev_b32 v5, 4, v0
    v_mul_u32_u24 v5, 18, v5
    v_and_b32 v1, 1, v1
    v_add_u32 v5, v5, v1
    v_and_b32 v3, 16, v0
    v_xor_b32 v3, 16, v3
    v_add_u32 v5, v5, v3
    v_mul_u32_u24 v5, 1152, v5
    v_add_u32 v5, v5, v2
    s_lshl_b32 s64, s{S_NT}, 7
    s_mul_i32 s65, s{S_WQ}, {8*18*1152}
    s_add_u32 s65, s65, s64
    s_lshl_b32 s66, s{S_WQ}, 14
    """)
    for n in range(16):
        ks = n >> 1
        row = 18 * ks + 2 * (ks & 1) + 8 * (n & 1)
        a(f"""
    s_add_u32 m0, s66, {1024*n}
    s_add_u32 s67, s65, {row*1152}
    buffer_load_dwordx4 v4, {sr(SRD_W,4)}, s67 offen lds
    """)
    a(f"s_lshl_b32 s66, s{S_WQ}, 11")
    for n in range(2):
        a(f"""
    s_add_u32 m0, s66, {65536 + 1024*n}
    s_add_u32 s67, s65, {72*n*1152}
    buffer_load_dwordx4 v5, {sr(SRD_W,4)}, s67 offen lds
    """)
    a(f"""
    v_mov_b32 v1, {T_FLAG}
    v_mov_b32 v2, 0
    ds_write_b32 v1, v2
L_t_nodma:
    s_cmp_eq_u32 s{S_SSM}, 0
    s_cbranch_scc1 L_t_nou
    """)
    a(f"""
    s_lshl_b32 s64, s{S_WAVE}, 9
    s_add_u32 s64, s64, {T_SSM + 480}
    v_lshl_add_u32 v1, v0, 3, s64
    s_mov_b32 s64, 0x05040100
    s_mov_b32 s65, 0x07060302
    """)
    a(f"""
    s_cmp_ge_u32 s{S_WAVE}, 4
    s_cbranch_scc1 L_t_w4
    s_waitcnt vmcnt({18 + (2 if mega else 0)})
    s_branch L_t_w0
L_t_w4:
    s_waitcnt vmcnt({2 if mega else 0})
L_t_w0:
    """)
    for c in range(4):
        sel = 64 + (c & 1)
        o = c >> 1
        a(f"""
    v_perm_b32 v{2+2*c}, v{V_UG+2+o}, v{V_UG+o}, s{sel}
    v_perm_b32 v{3+2*c}, v{V_UG+6+o}, v{V_UG+4+o}, s{sel}
    ds_write_b64 v1, {r(2+2*c,2)} offset:{c*T_CS}
    """)
    a(f"""
    s_cmp_lt_u32 s{S_WAVE}, 4
    s_cbranch_scc1 L_t_nou
    """)
    K = lambda i: f"v{V_KC+i}"
    a(f"""
    s_mul_i32 s64, s{S_WQ}, {T_CS}
    s_add_u32 s64, s64, {T_SSM}
    v_min_u32 v1, 33, v0
    v_lshlrev_b32 v2, 4, v1
    v_cmp_lt_u32 vcc, 29, v1
    v_mov_b32 v12, 0
    v_mov_b32 v13, 0
    v_cndmask_b32 v3, 0, 1, vcc
    v_cmp_lt_u32 vcc, 31, v1
    v_mul_u32_u24 v3, {T_E + 4096 - 480}, v3
    v_mov_b32 v14, 0
    v_cndmask_b32 v4, 0, 1, vcc
    v_mul_u32_u24 v4, {4160 - 32}, v4
    v_add3_u32 v2, v2, v3, v4
    v_add_u32 v2, s64, v2
    v_mov_b32 v15, 0
    ds_write_b128 v2, {r(12,4)}
    v_and_b32 v1, 31, v0
    v_lshlrev_b32 v2, 4, v1
    v_lshrrev_b32 v3, 5, v0
    v_lshl_add_u32 v2, v3, 9, v2
    v_sub_u32 v4, s64, v2
    v_lshlrev_b32 v3, 9, v3
    v_sub_u32 v5, v4, v3
    v_and_b32 v1, 1, v0
    v_cmp_eq_u32 vcc, 1, v1
    v_cvt_pk_bf16_f32 v8, {K(0)}, {K(0)}
    v_mov_b32 v9, s64
    v_cndmask_b32 v6, {K(12)}, {K(13)}, vcc
    v_cndmask_b32 v7, {K(14)}, {K(15)}, vcc
    s_mov_b64 exec, 1
    ds_write_b16 v9, v8 offset:{T_O + 4096}
    s_mov_b64 exec, -1
    """)
    def wr(vals, va, off, buf):
        for i, (lo, hi) in enumerate(vals): a(f"v_cvt_pk_bf16_f32 v{buf+i}, {lo}, {hi}")
        a(f"ds_write_b128 v{va}, {r(buf,4)} offset:{off}")
    wr([(K(7),K(6)),(K(5),K(4)),(K(3),K(2)),(K(1),K(0))], 4, T_E + 4080, 16)
    wr([(K(8),K(7)),(K(6),K(5)),(K(4),K(3)),(K(2),K(1))], 4, T_O + 4080, 20)
    k0, k4, k8 = K(9), K(10), K(11)
    wr([(k8,k8),(k4,k4),(k4,k0),(k0,k0)], 4, T_E + 4080 - 1024, 24)
    wr([(k8,k8),(k8,k4),(k4,k4),(k0,k0)], 4, T_O + 4080 - 1024, 28)
    for idx, (k0, k8, x) in enumerate(((K(12), K(13), "v6"), (K(14), K(15), "v7"))):
        wr([(k8,k8),(k8,x),(k0,k0),(k0,k0)], 5, T_E + 4080 - 2048 - 512*idx, 32 + 8*idx)
        wr([(k8,k8),(k8,k8),(x,k0),(k0,k0)], 5, T_O + 4080 - 2048 - 512*idx, 36 + 8*idx)
    a(f"""
L_t_nou:
    s_waitcnt lgkmcnt(0)
    s_barrier
    s_cmp_lt_u32 s{S_WAVE}, 4
    s_cbranch_scc1 L_t_p3
    s_cmp_eq_u32 s{S_SSM}, 1
    s_cbranch_scc1 L_t_conv
    s_waitcnt vmcnt(0)
    s_barrier
    s_cmp_eq_u32 s{S_DBL}, 0
    s_cbranch_scc1 L_end_tail
    s_branch L_t_p3b
    """)
    VAB, VB = 1, 5
    YA = 16
    BUF = [48, 112]
    a(f"""
L_t_conv:
    v_and_b32 v6, 15, v0
    v_lshrrev_b32 v7, 4, v0
    v_lshlrev_b32 v8, 4, v7
    v_lshl_add_u32 v{VB}, v6, 5, v8
    s_add_u32 s65, s64, 448
    v_add_u32 v{VB}, s65, v{VB}
    v_lshlrev_b32 v9, 1, v6
    v_sub_u32 v8, v8, v9
    v_and_b32 v9, 1, v0
    v_xor_b32 v9, 1, v9
    v_mul_u32_u24 v9, 4162, v9
    s_add_u32 s65, s64, {T_E + 4062 - 512}
    v_add3_u32 v{VAB}, v8, v9, s65
    v_subrev_u32 v{VAB+1}, 1024, v{VAB}
    v_subrev_u32 v{VAB+2}, 2048, v{VAB}
    v_subrev_u32 v{VAB+3}, 3072, v{VAB}
    """)
    def loads(buf):
        lst = []
        for i in range(8):
            o = 128 if (i & 1) == 0 else 0
            lst.append(f"ds_read_b128 {r(buf+32+4*i,4)}, v{VB} offset:{512*i}")
            lst.append(f"ds_read2_b32 {r(buf+4*i,2)}, v{VAB+(i>>1)} offset0:{o} offset1:{o+1}")
            lst.append(f"ds_read2_b32 {r(buf+4*i+2,2)}, v{VAB+(i>>1)} offset0:{o+2} offset1:{o+3}")
        return lst
    adv = [f"v_subrev_u32 v{VAB+m}, 64, v{VAB+m}" for m in range(4)] + [f"v_subrev_u32 v{VB}, 64, v{VB}"]
    for l in loads(BUF[0]): a(l)
    for l in adv: a(l)
    for i in range(32): a(f"v_mov_b32 v{YA+i}, 0")
    a("""
    s_mov_b32 s65, 0
L_conv_loop:
    """)
    for half in range(2):
        cur = BUF[half]; nxt = BUF[1 - half]
        fill = loads(nxt) + adv
        a("s_waitcnt lgkmcnt(0)")
        n = 0
        for i in range(8):
            for ct in range(i, 8):
                a(f"v_mfma_f32_16x16x32_bf16 {r(YA+4*ct,4)}, {r(cur+4*i,4)}, {r(cur+32+4*(ct-i),4)}, {r(YA+4*ct,4)}")
                if n < len(fill): a(fill[n]); n += 1
        assert n == len(fill)
    a(f"""
    s_cmp_lg_u32 s65, 1
    s_cbranch_scc1 L_conv_nb
    s_waitcnt vmcnt(0)
    s_barrier
L_conv_nb:
    s_add_u32 s65, s65, 1
    s_cmp_lt_u32 s65, 4
    s_cbranch_scc1 L_conv_loop
    v_lshlrev_b32 v8, 3, v7
    v_lshl_add_u32 v8, v6, 5, v8
    v_add_u32 v8, s64, v8
    s_waitcnt lgkmcnt(0)
    """)
    for ct in range(8):
        a(f"""
    v_cvt_pk_bf16_f32 v{48+2*ct}, v{YA+4*ct}, v{YA+4*ct+1}
    v_cvt_pk_bf16_f32 v{49+2*ct}, v{YA+4*ct+2}, v{YA+4*ct+3}
    ds_write_b64 v8, {r(48+2*ct,2)} offset:{512*ct}
    """)
    a(f"""
    s_lshl_b32 s64, s{S_WQ}, 10
    s_add_u32 s64, s64, {T_SSM}
    v_lshl_add_u32 v1, v0, 3, s64
    s_mul_i32 s64, s{S_WQ}, {512*2304}
    s_lshl_b32 s65, s{S_CHAN}, 1
    s_add_u32 s64, s64, s65
    v_mul_u32_u24 v2, {4*2304}, v0
    v_add_u32 v2, s64, v2
    s_mov_b32 s64, 0x05040100
    s_mov_b32 s65, 0x07060302
    s_waitcnt lgkmcnt(0)
    s_barrier
    """)
    for rd in range(2):
        for c in range(4):
            a(f"ds_read_b64 {r(16+8*rd+2*c,2)}, v1 offset:{c*T_CS + 512*rd}")
    for rd in range(2):
        a(f"s_waitcnt lgkmcnt({4 if rd == 0 else 0})")
        b = 16 + 8*rd
        if rd == 1: a(f"v_add_u32 v2, {256*2304}, v2")
        a(f"v_add_u32 v3, {2*2304}, v2")
        for i in range(4):
            sel = 64 + (i & 1); o = i >> 1
            d = 32 + 8*rd + 2*i
            a(f"""
    v_perm_b32 v{d}, v{b+2+o}, v{b+o}, s{sel}
    v_perm_b32 v{d+1}, v{b+6+o}, v{b+4+o}, s{sel}
    global_store_dwordx2 v{2 + (i>>1)}, {r(d,2)}, {sr(P_OUT,2)} offset:{2304*(i&1)}
    """)
    a("s_branch L_end_tail")
    OF = 48; WFB = 128; ACC = 16
    a(f"""
L_t_p3:
    s_waitcnt vmcnt(18)
    s_barrier
    """)
    stamp(a, 8)
    if mega:
        a(f"""
    s_cmp_lg_u32 s{S_WAVE}, 0
    s_cbranch_scc1 L_t_p3b
    s_and_b32 s64, s{S_J}, 7
    s_lshl_b32 s64, s64, 5
    s_add_u32 s64, s64, s{S_H}
    s_lshl_b32 s64, s64, 4
    s_add_u32 s64, s64, {WS_F2}
    v_mov_b32 v1, 0
    v_mov_b32 v2, 1
    s_mov_b64 exec, 1
    buffer_store_dword v2, v1, {sr(SRD_WS,4)}, s64 offen sc1
    s_mov_b64 exec, -1
    v_and_b32 v1, 31, v0
    v_lshlrev_b32 v1, 4, v1
    s_lshl_b32 s64, s{S_XCD}, 9
    s_add_u32 s64, s64, {WS_F2}
    s_mov_b32 s65, {SPIN}
L_t_poll:
    buffer_load_dword v3, v1, {sr(SRD_WS,4)}, s64 offen sc1
    s_sub_u32 s65, s65, 1
    s_cmp_eq_u32 s65, 0
    s_cbranch_scc1 L_t_polled
    s_waitcnt vmcnt(0)
    v_cmp_ne_u32 vcc, 1, v3
    s_cbranch_vccnz L_t_poll
L_t_polled:
    v_mov_b32 v1, {T_FLAG}
    ds_write_b32 v1, v2
    """)
    a("L_t_p3b:")
    a(f"""
    s_lshr_b32 s66, s{S_WQ}, 1
    v_lshrrev_b32 v1, 5, v0
    v_bfe_u32 v2, v0, 2, 2
    v_lshl_add_u32 v3, v1, 3, v2
    v_lshlrev_b32 v3, 7, v3
    v_lshrrev_b32 v2, 1, v2
    v_xor_b32 v2, s66, v2
    v_lshl_add_u32 v3, v2, 6, v3
    v_and_b32 v2, 1, v0
    v_lshl_add_u32 v3, v2, 5, v3
    v_and_b32 v2, 16, v0
    v_add_u32 v3, v3, v2
    v_and_b32 v2, 2, v0
    v_lshl_add_u32 v3, v2, 2, v3
    s_lshl_b32 s64, s66, 15
    v_add_u32 v4, s64, v3
    v_xor_b32 v5, 64, v4
    s_lshl_b32 s64, s66, 12
    s_add_u32 s64, s64, 65536
    v_add_u32 v6, s64, v3
    v_xor_b32 v7, 64, v6
    s_lshl_b32 s67, s{S_XCD}, 3
    s_lshl_b32 s64, s{S_MT}, 1
    s_add_u32 s67, s67, s64
    s_and_b32 s64, s{S_WQ}, 1
    s_add_u32 s67, s67, s64
    s_mul_i32 s64, s67, {36*1024}
    s_add_u32 s64, s64, {WS_O}
    s_lshl_b32 s65, s66, 11
    s_add_u32 s65, s65, s64
    s_add_u32 s65, s65, {32*1024}
    s_lshl_b32 s68, s66, 14
    s_add_u32 s64, s64, s68
    v_lshlrev_b32 v8, 4, v0
    """)
    if mega:
        a(f"""
    v_mov_b32 v9, {T_FLAG}
    s_mov_b32 s68, {SPIN*8}
L_t_spin:
    ds_read_b32 v10, v9
    s_sub_u32 s68, s68, 1
    s_cmp_eq_u32 s68, 0
    s_cbranch_scc1 L_t_spun
    s_waitcnt lgkmcnt(0)
    v_cmp_ne_u32 vcc, 1, v10
    s_cbranch_vccnz L_t_spin
L_t_spun:
    """)
    stamp(a, 9)
    for i in range(16):
        a(f"buffer_load_dwordx4 {r(OF+4*i,4)}, v8, {sr(SRD_WS,4)}, s64 offen offset:{1024*(i&3)} sc1")
        if (i & 3) == 3 and i < 15: a("s_add_u32 s64, s64, 4096")
    for i in range(2):
        a(f"buffer_load_dwordx4 {r(OF+64+4*i,4)}, v8, {sr(SRD_WS,4)}, s65 offen offset:{1024*i} sc1")
    a(f"""
    s_waitcnt vmcnt(18)
    s_barrier
    """)
    NB = 3
    def wreads(i):
        b = WFB + 8 * (i % NB)
        if i < 16: ra, rb, off = 4, 5, 2048 * i
        else: ra, rb, off = 6, 7, 2048 * (i - 16)
        a(f"""
    ds_read_b64_tr_b16 {r(b,2)}, v{ra} offset:{off}
    ds_read_b64_tr_b16 {r(b+2,2)}, v{ra} offset:{off+512}
    ds_read_b64_tr_b16 {r(b+4,2)}, v{rb} offset:{off}
    ds_read_b64_tr_b16 {r(b+6,2)}, v{rb} offset:{off+512}
    """)
    wreads(0); wreads(1)
    for i in range(18):
        b = WFB + 8 * (i % NB)
        if i + 2 < 18: wreads(i + 2)
        a(f"s_waitcnt vmcnt({17-i}) lgkmcnt({4*min(2, 17-i)})")
        for t in range(2):
            cin = "0" if i == 0 else r(ACC+16*t, 16)
            a(f"v_mfma_f32_32x32x16_bf16 {r(ACC+16*t,16)}, {r(b+4*t,4)}, {r(OF+4*i,4)}, {cin}")
    a(f"""
    s_lshl_b32 s64, s{S_WAVE}, 12
    s_add_u32 s64, s64, {T_RED}
    v_add_u32 v1, s64, v8
    s_xor_b32 s64, s{S_WAVE}, 2
    s_lshl_b32 s64, s64, 12
    s_add_u32 s64, s64, {T_RED}
    v_add_u32 v2, s64, v8
    v_and_b32 v3, 31, v0
    v_mul_u32_u24 v3, 2304, v3
    v_lshrrev_b32 v4, 5, v0
    v_lshl_add_u32 v3, v4, 5, v3
    s_mul_i32 s64, s67, {32*2304}
    s_lshl_b32 s65, s{S_NT}, 7
    s_add_u32 s64, s64, s65
    s_lshl_b32 s65, s66, 6
    s_add_u32 s64, s64, s65
    s_add_u32 s64, s64, 1152
    v_add_u32 v3, s64, v3
    """)
    for m in range(4): a(f"ds_write_b128 v1, {r(ACC+16+4*m,4)} offset:{1024*m}")
    a("""
    s_waitcnt lgkmcnt(0)
    s_barrier
    """)
    for m in range(4): a(f"ds_read_b128 {r(48+4*m,4)}, v2 offset:{1024*m}")
    for m in range(4):
        a(f"s_waitcnt lgkmcnt({3-m})")
        for i in range(4): a(f"v_add_f32 v{ACC+4*m+i}, v{ACC+4*m+i}, v{48+4*m+i}")
        for i in range(2): a(f"v_cvt_pk_bf16_f32 v{64+2*m+i}, v{ACC+4*m+2*i}, v{ACC+4*m+2*i+1}")
        if m & 1: a(f"global_store_dwordx4 v3, {r(64+4*(m>>1),4)}, {sr(P_OUT,2)} offset:{16*(m>>1)}")
    a("L_end_tail:")
    stamp(a, 10)

SPIN = 400000

def kernel_text(name, a):
    return f""".text
.globl {name}
.p2align 8
.type {name},@function
{name}:
{a.text()}
.section .rodata,"a"
.p2align 6
.amdhsa_kernel {name}
  .amdhsa_next_free_vgpr 256
  .amdhsa_next_free_sgpr 96
  .amdhsa_accum_offset 256
  .amdhsa_group_segment_fixed_size 0
  .amdhsa_kernarg_size 120
  .amdhsa_user_sgpr_count 2
  .amdhsa_user_sgpr_kernarg_segment_ptr 1
  .amdhsa_system_sgpr_workgroup_id_x 1
.end_amdhsa_kernel
"""

def build():
    hdr = open("cdna_kernels/" + NAME + ".s.ref").read().split("; Override launch")[0]
    out = hdr
    mega = O.mode == "mega"
    if not mega:
        names = ["qkv_kernel", "attn_kernel", "tail_kernel"]
        for n in names:
            out += f"; @launch kernel={n} grid=(256,1,1) block=(512,1,1) lds={LDS_BYTES}\n"
        out += '.amdgcn_target "amdgcn-amd-amdhsa--gfx950"\n'
        a = Asm(); setup(a, "k1"); setup_srds(a); stamp(a, 0); p1_gemm(a); stamp(a, 2); a("L_end_k1:"); a("s_endpgm"); a.fix_hazards(O.verbose)
        out += kernel_text(names[0], a)
        a = Asm(); setup(a, "k2"); setup_srds(a); stamp(a, 5); slow = p2_attn(a, False); a("L_end_k2:"); a("s_endpgm"); slow(); a.fix_hazards(O.verbose)
        out += kernel_text(names[1], a)
        a = Asm(); setup(a, "k3"); setup_srds(a); stamp(a, 11); ssm_param_loads(a, "k3")
        a(f"s_cmp_eq_u32 s{S_SSM}, 0\ns_cbranch_scc1 L_k3_nog")
        u_gather(a)
        a("L_k3_nog:\ns_waitcnt vmcnt(4)")
        kgen(a); stamp(a, 3); tail(a, False); a("L_end_k3:"); a("s_endpgm"); a.fix_hazards(O.verbose)
        out += kernel_text(names[2], a)
    else:
        raise NotImplementedError
    return out

if __name__ == "__main__":
    O.verbose = False
    outf = "cdna_kernels/" + NAME + ".s"
    for arg in sys.argv[1:]:
        k, v = arg.split("=")
        if k == "out": outf = v
        elif k == "mode": O.mode = v
        else: setattr(O, k, int(v))
    open(outf, "w").write(build())
    print("wrote", outf)
```

```python
import sys
def kernel(name, body, init="", nvgpr=128, iters=200):
    return f"""
.text
.globl {name}
.p2align 8
.type {name},@function
{name}:
    s_load_dwordx2 s[4:5], s[0:1], 0
    v_lshrrev_b32 v1, 6, v0
    s_nop 1
    v_readfirstlane_b32 s6, v1
    s_lshl_b32 s7, s2, 4
    s_add_u32 s6, s6, s7
    s_lshl_b32 s6, s6, 4
{init}
    s_waitcnt lgkmcnt(0)
    s_barrier
    s_mov_b32 s10, {iters}
    s_memrealtime s[26:27]
    s_memtime s[12:13]
    s_waitcnt lgkmcnt(0)
.p2align 6
L_{name}:
{body}
    s_sub_u32 s10, s10, 1
    s_cmp_lg_u32 s10, 0
    s_cbranch_scc1 L_{name}
    s_nop 15
    s_nop 15
    s_memtime s[14:15]
    s_memrealtime s[28:29]
    s_waitcnt lgkmcnt(0)
    s_sub_u32 s14, s14, s12
    s_subb_u32 s15, s15, s13
    v_mov_b32 v2, s14
    v_mov_b32 v3, s15
    v_mov_b32 v4, s26
    v_mov_b32 v5, s28
    v_mov_b32 v1, s6
    global_store_dwordx4 v1, v[2:5], s[4:5]
    s_waitcnt vmcnt(0)
    s_endpgm
.section .rodata,"a"
.p2align 6
.amdhsa_kernel {name}
  .amdhsa_next_free_vgpr {nvgpr}
  .amdhsa_next_free_sgpr 32
  .amdhsa_accum_offset {nvgpr}
  .amdhsa_group_segment_fixed_size 0
  .amdhsa_kernarg_size 8
  .amdhsa_user_sgpr_count 2
  .amdhsa_user_sgpr_kernarg_segment_ptr 1
  .amdhsa_system_sgpr_workgroup_id_x 1
.end_amdhsa_kernel
"""
def meta(names, nv):
    s = ".amdgpu_metadata\n---\namdhsa.version: [1, 2]\namdhsa.kernels:\n"
    for n in names:
        s += f"""  - .name: {n}
    .symbol: {n}.kd
    .kernarg_segment_size: 8
    .kernarg_segment_align: 8
    .group_segment_fixed_size: 0
    .private_segment_fixed_size: 0
    .wavefront_size: 64
    .sgpr_count: 32
    .vgpr_count: {nv[n]}
    .max_flat_workgroup_size: 1024
    .args:
      - {{.name: kernargs, .size: 8, .offset: 0, .value_kind: by_value}}
"""
    return s + "...\n.end_amdgpu_metadata\n"
def build(tests, fname):
    s = '.amdgcn_target "amdgcn-amd-amdhsa--gfx950"\n'
    nv = {}
    for t in tests:
        s += kernel(*t)
        nv[t[0]] = t[3]
    s += meta([t[0] for t in tests], nv)
    open(fname, "w").write(s)
def zinit(n0, n1, val="0"):
    return "\n".join(f"    v_mov_b32 v{i}, {val}" for i in range(n0, n1))
```

```python
from mbgen import *
import json, re
tests=[]; spec=[]
def add(name, body, init="", nv=256, iters=1, waves=(4,), grid=256, lds=160*1024):
    tests.append((name, body, init, nv, iters)); spec.append((name, iters, list(waves), grid, lds))
src=open("v/cur.s").read()
seg=src[src.index("L_t_conv:"):src.index("L_t_pub:")]
lines=[l for l in seg.split("\n")[1:] if l.strip()]
i0=min(i for i,l in enumerate(lines) if "v_mfma" in l); i1=max(i for i,l in enumerate(lines) if "v_mfma" in l)
core=[l for l in lines[i0:i1+1] if any(k in l for k in ("v_mfma","ds_read_b64","ds_read_b128","ds_read2","lgkmcnt","v_cvt","s_nop"))]
init="""
    v_and_b32 v250, 63, v0
    v_lshrrev_b32 v251, 6, v0
    v_and_b32 v252, 15, v250
    v_lshrrev_b32 v253, 4, v250
    v_lshlrev_b32 v254, 4, v253
    v_lshl_add_u32 v221, v252, 5, v254
    v_mul_u32_u24 v255, 4608, v251
    v_add_u32 v221, v221, v255
    v_add_u32 v221, 98304, v221
    v_mov_b32 v222, v221
    v_lshlrev_b32 v255, 1, v252
    v_sub_u32 v254, v254, v255
    v_add_u32 v255, 1, v250
    v_and_b32 v255, 3, v255
    v_mul_u32_u24 v255, 2242, v255
    v_add_u32 v220, v254, v255
    v_mul_u32_u24 v255, 9728, v251
    v_add_u32 v220, v220, v255
    v_add_u32 v220, 116766, v220
    v_and_b32 v223, -4, v220
""" + zinit(2,200,"0")
add("conv_full","\n".join(core),init)
add("conv_nolds","\n".join(l for l in core if "ds_read" not in l),init)
add("conv_nowait","\n".join(l for l in core if "lgkmcnt" not in l),init)
add("conv_mfma","\n".join(l for l in core if "v_mfma" in l),init)
print(len(core), sum("v_mfma" in l for l in core))
build(tests, "mb/mb16.s")
json.dump(spec, open("mb/mb16.json","w"))
```
